```python
import torch

def _softmax(x, axis=-1):
    return torch.softmax(x, dim=axis)

def _gelu(x):
    return torch.nn.functional.gelu(x, approximate='tanh')

def _silu(x):
    return torch.nn.functional.silu(x)

def _sigmoid(x):
    return torch.sigmoid(x)

def _layernorm(x, axis=-1, eps=1e-05):
    m = x.mean(dim=axis, keepdim=True)
    v = x.var(dim=axis, keepdim=True, unbiased=False)
    return (x - m) / torch.sqrt(v + eps)

def _scatter_add(tgt, idx, src, axis=0):
    return tgt.clone().index_add_(axis, idx, src)

def _segment_sum(src, seg, n):
    out = torch.zeros((n,) + src.shape[1:], dtype=src.dtype)
    return out.index_add_(0, seg, src)

def _pad(x, pw):
    flat = tuple((v for pair in reversed(pw) for v in pair))
    return torch.nn.functional.pad(x, flat)
kernel_name = 'adaLN_cond__spectral_gfnet__glu_gated_bilinear__prompt'

def setup_inputs():

    _w = lambda a: (lambda t: t.to(torch.bfloat16) if t.is_floating_point() else t)(torch.as_tensor(a))

    def _A_setup():
        B, S, D = (1, 2048, 576)
        Df = D // 2 + 1
        return {'x': _w((lambda *s: torch.randn(*s, dtype=torch.bfloat16) * 0.05)(B, S, D)), 'w_r': _w((lambda *s: torch.randn(*s, dtype=torch.bfloat16) * 3.2)(S, Df) * 0.02), 'w_i': _w((lambda *s: torch.randn(*s, dtype=torch.bfloat16) * 3.2)(S, Df) * 0.02)}
    _A_in = _A_setup()

    def _B_setup():
        B, S, D, F = (1, 2048, 576, 4608)
        return {'x': _w((lambda *s: torch.randn(*s, dtype=torch.bfloat16) * 0.05)(B, S, D)), 'w_gate': _w((lambda *s: torch.randn(*s, dtype=torch.bfloat16) * 0.4)(D, F) * D ** (-0.5)), 'w_up': _w((lambda *s: torch.randn(*s, dtype=torch.bfloat16) * 0.4)(D, F) * D ** (-0.5)), 'w_down': _w((lambda *s: torch.randn(*s, dtype=torch.bfloat16) * 0.4)(F, D) * F ** (-0.5))}
    _B_in = _B_setup()
    return {'A_x': _A_in['x'], 'A_w_r': _A_in['w_r'], 'A_w_i': _A_in['w_i'], 'B_x': _B_in['x'], 'B_w_gate': _B_in['w_gate'], 'B_w_up': _B_in['w_up'], 'B_w_down': _B_in['w_down'], 'c': _w((lambda *s: torch.randn(*s, dtype=torch.bfloat16) * 0.1)(1, 576) * 8.0), 'w_mod': _w((lambda *s: torch.randn(*s, dtype=torch.bfloat16) * 0.1)(576, 6 * 576) * 576 ** (-0.5) * 8.0)}

def reference(A_x, A_w_r, A_w_i, B_x, B_w_gate, B_w_up, B_w_down, c, w_mod):

    def _A_ref(x, w_r, w_i):
        B, S, D = x.shape
        X = (lambda x, axes=(-2, -1): torch.fft.rfft2(x.float(), dim=axes))(x, axes=(-2, -1))
        W = w_r + 1j * w_i
        X = X * W
        y = (lambda x, s, axes=(-2, -1): torch.fft.irfft2(x, s=s, dim=axes).to(torch.bfloat16))(X, (S, D), axes=(-2, -1))
        return y

    def _B_ref(x, w_gate, w_up, w_down):
        g = torch.einsum('bsd,df->bsf', x, w_gate)
        u = torch.einsum('bsd,df->bsf', x, w_up)
        h = g * u
        return torch.einsum('bsf,fd->bsd', h, w_down)
    x = A_x
    mod = (_silu(c) @ w_mod).reshape(c.shape[0], 6, 1, -1)
    sa, ca, ga, sb, cb, gb = (mod[:, 0].clone(), mod[:, 1].clone(), mod[:, 2].clone(), mod[:, 3].clone(), mod[:, 4].clone(), mod[:, 5].clone())
    h = _layernorm(x, axis=-1) * (1 + ca) + sa
    x = x + ga * _A_ref(h, A_w_r, A_w_i)
    h = _layernorm(x, axis=-1) * (1 + cb) + sb
    x = x + gb * _B_ref(h, B_w_gate, B_w_up, B_w_down)
    return x
```

```python
import re, struct
TRANS = ("v_exp_f32", "v_log_f32", "v_rcp_f32", "v_rsq_f32", "v_sqrt_f32", "v_sin_f32", "v_cos_f32")
def regs(op):
    op = op.strip().lstrip("-").replace("abs(", "").replace("|", "").rstrip(")")
    m = re.fullmatch(r"([vas])(\d+)", op)
    if m: return {(m.group(1), int(m.group(2)))}
    m = re.fullmatch(r"([vas])\[(\d+):(\d+)\]", op)
    if m: return {(m.group(1), i) for i in range(int(m.group(2)), int(m.group(3)) + 1)}
    if op == "vcc": return {("s", 106), ("s", 107)}
    if op == "m0": return {("s", 124)}
    if op == "exec": return {("s", 126), ("s", 127)}
    return set()
class Ins:
    def __init__(self, line):
        line = line.split(";")[0].strip()
        p = line.split(None, 1)
        self.mn = mn = p[0]
        rest = p[1] if len(p) > 1 else ""
        ops = [o.strip() for o in rest.split(",")] if rest else []
        mods = ""
        if ops:
            q = ops[-1].split(None, 1)
            ops = [o.strip() for o in re.split(r",(?![^\[]*\])", rest)]
            q = ops[-1].split(None, 1)
            ops[-1] = q[0]; mods = q[1] if len(q) > 1 else ""
        self.mods = mods
        R = [regs(o) for o in ops]
        self.w = set(); self.r = set(); self.kind = "other"; self.A = self.B = self.C = set(); self.sdata = set()
        base = re.sub(r"_(e32|e64|dpp|sdwa)$", "", mn)
        self.base = base
        if mn.startswith("v_mfma"):
            self.kind = "mfma"; self.w = R[0]; self.A, self.B, self.C = R[1], R[2], R[3]; self.r = R[1] | R[2] | R[3]
            self.passes = 8 if "32x32x16" in mn else 4
        elif mn.startswith("v_"):
            self.kind = "valu"
            self.w = set(R[0]);
            for x in R[1:]: self.r |= x
            if base.startswith("v_permlane"): self.w |= R[1]; self.r |= R[0]
            if base in ("v_fmac_f32", "v_dot2c_f32_bf16", "v_pk_fmac_f16") or "dpp" in mn or "row_" in mods or "quad_perm" in mods: self.r |= R[0]
            if base in ("v_add_co_u32", "v_addc_co_u32", "v_sub_co_u32"): self.w |= R[1]
            if base.startswith("v_cmpx"): self.w |= regs("exec")
            self.dpp = ("dpp" in mn or "row_" in mods or "quad_perm" in mods)
            self.trans = base in TRANS
        elif mn.startswith("buffer_") or mn.startswith("global_"):
            self.kind = "vmem"
            self.lds = ("lds" in mods.split()) or "_lds_" in mn
            if mn.startswith("buffer_load") and not self.lds or mn.startswith("global_load") and not self.lds:
                self.w = R[0]
                for x in R[1:]: self.r |= x
                if "d16" in mn: self.r |= R[0]
            else:
                for x in R: self.r |= x
                if "store" in mn or "atomic" in mn:
                    self.sdata = R[0] if mn.startswith("buffer_") else R[1]
                    if "atomic" in mn and "sc0" in mods.split(): self.w = R[0]
            if self.lds: self.r |= regs("m0")
        elif mn.startswith("ds_"):
            self.kind = "ds"
            if mn.startswith("ds_read") or "permute" in mn or "swizzle" in mn:
                self.w = R[0]
                for x in R[1:]: self.r |= x
            else:
                for x in R: self.r |= x
        elif mn.startswith("s_"):
            self.kind = "salu"
            if mn.startswith(("s_cmp", "s_cbranch", "s_branch", "s_waitcnt", "s_nop", "s_barrier", "s_endpgm", "s_sleep", "s_setprio")):
                for x in R: self.r |= x
            else:
                if R: self.w = set(R[0])
                for x in R[1:]: self.r |= x
                if "saveexec" in mn: self.w |= regs("exec")
        self.states = 1
        if mn == "s_nop": self.states = int(ops[0], 0) + 1
def need(p, c):
    n = 0
    isv = lambda S: {x for x in S if x[0] in "va"}
    iss = lambda S: {x for x in S if x[0] == "s"}
    if p.kind == "valu":
        if c.kind == "mfma" and isv(p.w) & c.r: n = max(n, 2)
        if c.kind == "mfma" and p.w & regs("exec"): n = max(n, 4)
        if p.trans and c.kind in ("valu",) and not c.trans and p.w & c.r: n = max(n, 1)
        if p.trans and c.kind in ("vmem", "ds", "mfma") and p.w & c.r: n = max(n, 2)
        if c.kind == "vmem" and iss(p.w) & c.r: n = max(n, 5)
        if c.kind == "valu" and iss(p.w) & c.r: n = max(n, 4 if c.base in ("v_readlane_b32", "v_writelane_b32") else 2)
        if c.kind == "salu" and iss(p.w) & c.r: n = max(n, 1)
        if c.kind == "valu" and c.base in ("v_readfirstlane_b32", "v_readlane_b32") and isv(p.w) & c.r: n = max(n, 1)
        if c.kind == "valu" and (c.dpp or c.base.startswith("v_permlane")) and isv(p.w) & c.r: n = max(n, 2)
        if c.kind == "valu" and p.w & regs("exec"): n = max(n, 5)
        if p.base.startswith("v_dot") and c.kind in ("valu", "mfma", "vmem", "ds") and p.w & (c.r | c.w):
            if not (c.base == p.base and not (p.w & (c.r - c.w))): n = max(n, 3)
    if p.kind == "mfma":
        big = p.passes == 8
        if c.kind == "mfma":
            if p.w & (c.A | c.B): n = max(n, 12 if big else 8)
            if p.w & c.C and not (p.w == c.C and p.passes == c.passes): n = max(n, 10 if big else 6)
            if p.w & c.w and not (p.w & c.C) : n = max(n, 12 if big else 8)
        elif c.kind in ("valu", "vmem", "ds"):
            if p.w & (c.r | c.w): n = max(n, 12 if big else 8)
            if c.kind == "valu" and p.C & c.w: n = max(n, 7 if big else 3)
            if c.kind in ("ds", "vmem") and p.C & c.w: n = max(n, 7 if big else 3)
    if p.kind == "salu":
        if regs("m0") & p.w and c.kind == "vmem" and c.lds: n = max(n, 1)
    if p.kind == "vmem" and len(p.sdata) >= 3 and p.sdata & c.w: n = max(n, 2)
    if p.kind == "ds" and p.mn.startswith("ds_write_b128") and c.kind == "valu" and isv(p.r) & c.w: n = max(n, 1)
    return n

class Asm:
    def __init__(self):
        self.lines = []; self.kernels = []; self.launch = []; self.uid = 0
        self.hist = []; self.npad = 0
    def raw(self, l): self.lines.append(l)
    def __call__(self, s):
        for l in s.split("\n"):
            l = l.strip()
            if not l or l.startswith(";"): continue
            if l.endswith(":") or l.startswith("."):
                self.lines.append(l); continue
            c = Ins(l)
            dist = 0; pad = 0
            for p in reversed(self.hist):
                pad = max(pad, need(p, c) - dist)
                dist += p.states
                if dist >= 12: break
            if pad > 0:
                self.lines.append(f"    s_nop {pad-1}"); self.hist.append(Ins(f"s_nop {pad-1}")); self.npad += 1
            self.lines.append("    " + l); self.hist.append(c)
            self.hist = self.hist[-16:]
    STAMP = False
    WS_STAMP = 0x4000000
    def stamp(self, i):
        if self.STAMP: self(f"s_memrealtime s[{64+2*i}:{65+2*i}]")
    def stamp_flush(self, kid, n, v=1):
        if not self.STAMP: return
        self(f"""
        s_memrealtime s[{64+2*n}:{65+2*n}]
        s_load_dwordx2 s[60:61], s[0:1], 88
        s_mov_b64 exec, 1
        v_lshrrev_b32 v{v}, 6, v0
        v_lshlrev_b32 v{v}, 6, v{v}
        s_lshl_b32 s62, s2, 10
        s_add_u32 s62, s62, {self.WS_STAMP + kid * 0x100000}
        v_add_u32 v{v}, s62, v{v}
        s_waitcnt lgkmcnt(0)
        """)
        for i in range(n + 1):
            self(f"v_mov_b32 v{v+1}, s{64+2*i}\nv_mov_b32 v{v+2}, s{65+2*i}\nglobal_store_dwordx2 v{v}, v[{v+1}:{v+2}], s[60:61] offset:{8*i}")
    def label(self, p="L"):
        self.uid += 1
        return f"{p}_{self.uid}"
    def begin(self, name):
        self.hist = []
        self.lines += [f".globl {name}", ".p2align 8", f".type {name},@function", f"{name}:"]
    def end(self, name, vgpr, sgpr=96, agpr=0):
        acc = (vgpr + 3) // 4 * 4
        self.kernels.append((name, acc + agpr if agpr else vgpr, 96 if self.STAMP else sgpr, acc))
    def srd(self, d, lo, nbytes, off=0):
        if off:
            self(f"s_add_u32 s{d}, s{lo}, {off}\ns_addc_u32 s{d+1}, s{lo+1}, 0")
        else:
            self(f"s_mov_b32 s{d}, s{lo}\ns_mov_b32 s{d+1}, s{lo+1}")
        self(f"s_mov_b32 s{d+2}, {nbytes}\ns_mov_b32 s{d+3}, 0x20000")
    def text(self, header):
        out = [header.rstrip("\n")]
        for (k, g, b, lds) in self.launch:
            out.append(f"; @launch kernel={k} grid=({g},1,1) block=({b},1,1) lds={lds}")
        out += ['.amdgcn_target "amdgcn-amd-amdhsa--gfx950"', ".text"]
        out += self.lines
        out += ['.section .rodata,"a"']
        for (k, v, s, acc) in self.kernels:
            out += [".p2align 6", f".amdhsa_kernel {k}", f"  .amdhsa_next_free_vgpr {v}", f"  .amdhsa_next_free_sgpr {s}",
                    f"  .amdhsa_accum_offset {acc}", "  .amdhsa_group_segment_fixed_size 0", "  .amdhsa_kernarg_size 96",
                    "  .amdhsa_user_sgpr_count 2", "  .amdhsa_user_sgpr_kernarg_segment_ptr 1",
                    "  .amdhsa_system_sgpr_workgroup_id_x 1", "  .amdhsa_float_denorm_mode_32 3", "  .amdhsa_float_denorm_mode_16_64 3", ".end_amdhsa_kernel"]
        return "\n".join(out) + "\n"

def vr(b, n=1): return f"v{b}" if n == 1 else f"v[{b}:{b+n-1}]"
def ar(b, n=1): return f"a{b}" if n == 1 else f"a[{b}:{b+n-1}]"
def sr(b, n=1): return f"s{b}" if n == 1 else f"s[{b}:{b+n-1}]"
def f2u(x): return "0x%08x" % struct.unpack("<I", struct.pack("<f", x))[0]
class RA:
    def __init__(self, start=1): self.n = start; self.hi = start
    def __call__(self, cnt=1, align=1):
        if cnt >= 2 and align == 1: align = 2
        self.n = (self.n + align - 1) // align * align
        b = self.n; self.n += cnt; self.hi = max(self.hi, self.n); return b
    def mark(self): return self.n
    def reset(self, m): self.n = m
```

```python
from asmlib import *
import math
WS_MOD = 0
WS_A = 0x10000
A_BYTES = 578 * 4096
WS_B = 0x280000
B_STRIDE = 18 * 2048 + 128
B_BYTES = 64 * B_STRIDE
WS_X1 = 0x500000
X1_BYTES = 2048 * 576 * 2
WS_P = 0x800000
WS_H2 = 0x3000000
XB = 2048 * 576 * 2
WB = 576 * 4608 * 2
WRB = 2048 * 289 * 2

def bf16r(A, d, s):
    A(f"v_cvt_pk_bf16_f32 v{d}, v{s}, v{s}\nv_lshlrev_b32 v{d}, 16, v{d}")

def k0(A):
    name = "k0_kernel"
    NG, NT = 54, 36
    A.launch.append((name, NG + NT, 512, 18432))
    A.begin(name)
    A(f"""
    s_cmp_ge_u32 s2, {NG+NT}
    s_cbranch_scc1 K0_end
    s_cmp_ge_u32 s2, {NG}
    s_cbranch_scc1 K0_touch
    """)
    A.stamp(0)
    A(f"""
    s_load_dwordx4 s[4:7], s[0:1], 56
    s_load_dwordx2 s[8:9], s[0:1], 88
    v_lshrrev_b32 v1, 3, v0
    v_and_b32 v2, 7, v0
    v_mul_u32_u24 v3, 6912, v1
    v_lshl_add_u32 v3, v2, 4, v3
    v_lshlrev_b32 v4, 1, v1
    s_waitcnt lgkmcnt(0)
    """)
    A.srd(12, 4, 1152); A.srd(16, 6, 576 * 6912); A.srd(20, 8, 6912, WS_MOD)
    A("s_lshl_b32 s3, s2, 7")
    C, W, ACC = 10, 20, 56
    for i in range(9): A(f"buffer_load_ushort v{C+i}, v4, s[12:15], 0 offen offset:{128*i}")
    for i in range(9):
        A(f"buffer_load_dwordx4 {vr(W+4*i,4)}, v3, s[16:19], s3 offen")
        if i < 8: A(f"s_add_u32 s3, s3, {64*6912}")
    A.stamp(1)
    A("s_waitcnt vmcnt(9)")
    A.stamp(2)
    for i in range(9): A(f"v_lshlrev_b32 v{C+i}, 16, v{C+i}")
    for i in range(9): A(f"v_mul_f32 v{ACC+i}, {f2u(-math.log2(math.e))}, v{C+i}")
    for i in range(9): A(f"v_exp_f32 v{ACC+i}, v{ACC+i}")
    for i in range(9): A(f"v_add_f32 v{ACC+i}, 1.0, v{ACC+i}")
    for i in range(9): A(f"v_rcp_f32 v{ACC+i}, v{ACC+i}")
    for i in range(9): A(f"v_mul_f32 v{C+i}, v{C+i}, v{ACC+i}")
    for i in range(9): bf16r(A, C + i, C + i)
    for i in range(9):
        A(f"s_waitcnt vmcnt({8-i})")
        for j in range(4):
            A(f"v_lshlrev_b32 v5, 16, v{W+4*i+j}\nv_and_b32 v6, 0xffff0000, v{W+4*i+j}")
            if i == 0: A(f"v_mul_f32 v{ACC+2*j}, v5, v{C}\nv_mul_f32 v{ACC+2*j+1}, v6, v{C}")
            else: A(f"v_fmac_f32 v{ACC+2*j}, v5, v{C+i}\nv_fmac_f32 v{ACC+2*j+1}, v6, v{C+i}")
    A.stamp(3)
    A(f"""
    v_lshlrev_b32 v7, 5, v0
    ds_write_b128 v7, {vr(ACC,4)}
    ds_write_b128 v7, {vr(ACC+4,4)} offset:16
    v_and_b32 v8, 63, v0
    v_lshrrev_b32 v9, 6, v0
    v_lshlrev_b32 v8, 2, v8
    v_lshl_add_u32 v7, v9, 11, v8
    s_waitcnt lgkmcnt(0)
    s_barrier
    """)
    for q in range(8): A(f"ds_read_b32 v{W+q}, v7 offset:{256*q}")
    A("s_waitcnt lgkmcnt(0)")
    for q in range(1, 8): A(f"v_add_f32 v{W}, v{W}, v{W+q}")
    A(f"""
    v_lshlrev_b32 v7, 2, v0
    ds_write_b32 v7, v{W} offset:16384
    s_waitcnt lgkmcnt(0)
    s_barrier
    v_cmp_gt_u32 vcc, 64, v0
    s_and_saveexec_b64 s[24:25], vcc
    s_cbranch_execz K0_end
    """)
    for q in range(8): A(f"ds_read_b32 v{W+q}, v7 offset:{16384+256*q}")
    A(f"""
    s_mul_i32 s26, s2, 57
    s_lshr_b32 s26, s26, 9          ; section
    s_mul_i32 s27, s26, 9
    s_sub_u32 s27, s2, s27          ; wg % 9
    s_lshl_b32 s27, s27, 8          ; *64*4
    s_lshl_b32 s28, s26, 2
    s_lshr_b32 s29, 0x211200, s28
    s_and_b32 s29, s29, 15
    s_mul_i32 s29, s29, 2304
    s_add_u32 s27, s27, s29
    s_lshr_b32 s29, 0x32, s26
    s_and_b32 s29, s29, 1
    s_lshl_b32 s29, s29, 1
    s_add_u32 s27, s27, s29
    s_lshr_b32 s29, 0x12, s26
    s_and_b32 s29, s29, 1
    s_mul_i32 s29, s29, 0x3f800000
    s_waitcnt lgkmcnt(0)
    """)
    for q in range(1, 8): A(f"v_add_f32 v{W}, v{W}, v{W+q}")
    bf16r(A, W, W)
    A(f"""
    v_add_f32 v{W}, s29, v{W}
    v_cvt_pk_bf16_f32 v{W}, v{W}, v{W}
    buffer_store_short v{W}, v7, s[20:23], s27 offen
    """)
    A.stamp_flush(0, 4)
    A(f"""
    s_endpgm
    K0_touch:
    s_load_dwordx4 s[4:7], s[0:1], 0
    s_load_dwordx2 s[8:9], s[0:1], 16
    s_sub_u32 s3, s2, {NG}
    s_lshl_b32 s3, s3, 16
    v_lshlrev_b32 v1, 7, v0
    s_waitcnt lgkmcnt(0)
    """)
    A.srd(12, 4, XB); A.srd(16, 6, WRB); A.srd(20, 8, WRB)
    A(f"""
    buffer_load_dword v2, v1, s[12:15], s3 offen
    buffer_load_dword v3, v1, s[16:19], s3 offen
    buffer_load_dword v4, v1, s[20:23], s3 offen
    s_waitcnt vmcnt(0)
    K0_end:
    s_endpgm
    """)
    A.end(name, 72, 40)

def decode_wg(A):
    A("""
    v_lshrrev_b32 v1, 6, v0
    s_and_b32 s16, s2, 7
    s_lshr_b32 s17, s2, 3
    v_readfirstlane_b32 s15, v1
    s_mul_i32 s18, s17, 43
    s_lshr_b32 s18, s18, 7
    s_mul_i32 s19, s18, 3
    s_sub_u32 s17, s17, s19
    s_lshl_b32 s16, s16, 3
    s_add_u32 s16, s16, s18
    """)

def gen_pairs(A, items):
    pass

def k1(A, touch_arg=32):
    name = "k1_kernel"
    A.launch.append((name, 192, 384, 42240))
    A.begin(name)
    L_ST, L_MOD = 36864, 39936
    A(f"""
    s_cmp_ge_u32 s2, 192
    s_cbranch_scc1 K1_end
    """)
    A.stamp(0)
    A(f"""
    s_load_dwordx2 s[4:5], s[0:1], 0
    s_load_dwordx2 s[6:7], s[0:1], {touch_arg}
    s_load_dwordx2 s[8:9], s[0:1], 88
    """)
    decode_wg(A)
    R = RA(2)
    row, t12, vx, tmp, tmp2 = R(), R(), R(), R(), R()
    n, g, lane = R(), R(), R()
    X = R(24, 4); MP = R(4, 4); TO = R()
    TC = R(36, 4); TS = R(36, 4); M = R(32, 4); F = R(48, 4); MR = R(24, 4)
    A(f"""
    v_mul_u32_u24 v{row}, 5462, v0
    v_lshrrev_b32 v{row}, 16, v{row}
    v_mul_u32_u24 v{t12}, 12, v{row}
    v_sub_u32 v{t12}, v0, v{t12}
    v_mul_u32_u24 v{vx}, {64*1152}, v{row}
    v_lshl_add_u32 v{vx}, v{t12}, 4, v{vx}
    s_mul_i32 s18, s16, 1152
    v_lshlrev_b32 v{tmp}, 4, v0
    s_mul_i32 s19, s2, {384*128}
    v_lshlrev_b32 v{tmp2}, 7, v0
    s_waitcnt lgkmcnt(0)
    """)
    A.srd(20, 4, XB); A.srd(24, 8, 2304, WS_MOD); A.srd(28, 6, WB); A.srd(32, 8, A_BYTES, WS_A)
    for h in range(2):
        for i in range(3):
            A(f"buffer_load_dwordx4 {vr(X+4*(3*h+i),4)}, v{vx}, s[20:23], s18 offen offset:{192*i+576*h}")
    A(f"buffer_load_dwordx4 {vr(MP,4)}, v{tmp}, s[24:27], 0 offen")
    A(f"buffer_load_dword v{TO}, v{tmp2}, s[28:31], s19 offen")
    A.stamp(1)
    kq, t0 = F, F + 1
    A(f"""
    s_mul_i32 s36, s17, 6
    s_add_u32 s36, s36, s15         ; ct
    s_cmp_ge_u32 s36, 9
    s_cselect_b32 s37, 1, 0         ; p
    s_mul_i32 s38, s37, 9
    s_sub_u32 s38, s36, s38
    s_lshl_b32 s38, s38, 5
    s_add_u32 s38, s38, s37         ; 32*ct' + p
    v_and_b32 v{lane}, 63, v0
    v_and_b32 v{n}, 15, v0
    v_lshrrev_b32 v{g}, 4, v{lane}
    v_lshl_add_u32 v{kq}, v{n}, 1, s38
    v_cvt_f32_u32 v{kq}, v{kq}
    v_mul_f32 v{kq}, {f2u(1/576)}, v{kq}
    v_mul_u32_u24 v{t0}, 72, v{g}
    v_cvt_f32_u32 v{t0}, v{t0}
    v_mul_f32 v{t0}, v{t0}, v{kq}
    """)
    T = F + 4
    for c in range(0, 72, 2):
        b = T + 6 * ((c // 2) % 2)
        A(f"""
        v_fmamk_f32 v{b}, v{kq}, {f2u(c)}, v{t0}
        v_fmamk_f32 v{b+1}, v{kq}, {f2u(c+1)}, v{t0}
        v_cos_f32 v{b+2}, v{b}
        v_cos_f32 v{b+3}, v{b+1}
        v_sin_f32_e64 v{b+4}, -v{b}
        v_sin_f32_e64 v{b+5}, -v{b+1}
        v_cvt_pk_bf16_f32 v{TC+c//2}, v{b+2}, v{b+3}
        v_cvt_pk_bf16_f32 v{TS+c//2}, v{b+4}, v{b+5}
        """)
    A(f"""
    s_cmp_lg_u32 s36, 0
    s_cbranch_scc1 K1_nofix
    v_cmp_eq_u32 vcc, 0, v{n}
    s_and_saveexec_b64 s[40:41], vcc
    """)
    for i in range(36): A(f"v_mov_b32 v{TS+i}, 0xbf803f80")
    A("s_mov_b64 exec, s[40:41]\nK1_nofix:")
    gen_M(A, M, n, g, F, "k1")
    su, sq = tmp, tmp2
    su, sq = MR, MR + 1
    A.stamp(2)
    A("s_waitcnt vmcnt(2)")
    A.stamp(3)
    for i in range(24):
        A(f"v_lshlrev_b32 v{F+2*i}, 16, v{X+i}\nv_and_b32 v{F+2*i+1}, 0xffff0000, v{X+i}")
    A(f"v_add_f32 v{su}, v{F}, v{F+1}\nv_mul_f32 v{sq}, v{F}, v{F}\nv_add_f32 v{MR+2}, v{F+2}, v{F+3}\nv_mul_f32 v{MR+3}, v{F+1}, v{F+1}")
    A(f"v_fmac_f32 v{sq}, v{F+2}, v{F+2}\nv_fmac_f32 v{MR+3}, v{F+3}, v{F+3}")
    for i in range(4, 48):
        o = 2 * (i % 2)
        A(f"v_add_f32 v{su+o}, v{su+o}, v{F+i}\nv_fmac_f32 v{sq+o}, v{F+i}, v{F+i}")
    A(f"""
    v_add_f32 v{su}, v{su}, v{MR+2}
    v_add_f32 v{sq}, v{sq}, v{MR+3}
    v_lshlrev_b32 v{vx}, 3, v0
    ds_write_b64 v{vx}, {vr(su,2)} offset:{L_ST}
    s_waitcnt vmcnt(1)
    v_cmp_gt_u32 vcc, 144, v0
    s_and_saveexec_b64 s[40:41], vcc
    ds_write_b128 v{tmp}, {vr(MP,4)} offset:{L_MOD}
    s_mov_b64 exec, s[40:41]
    v_mul_u32_u24 v{vx}, 96, v{row}
    s_waitcnt lgkmcnt(0)
    s_barrier
    """)
    for q in range(6): A(f"ds_read_b128 {vr(X+4*q,4)}, v{vx} offset:{L_ST+16*q}")
    A(f"v_lshlrev_b32 v{tmp}, 5, v{t12}")
    def modread(i):
        for h in range(2):
            for q in range(2):
                A(f"ds_read_b128 {vr(MR+8*h+4*q,4)}, v{tmp} offset:{L_MOD+384*i+1152*h+16*q}")
    modread(0)
    A("s_waitcnt lgkmcnt(4)")
    for q in range(1, 12): A(f"v_add_f32 v{X}, v{X}, v{X+2*q}\nv_add_f32 v{X+1}, v{X+1}, v{X+2*q+1}")
    rs, nb = X + 2, X + 3
    A(f"""
    v_mul_f32 v{X}, {f2u(1/576)}, v{X}
    v_mul_f32 v{X+1}, {f2u(1/576)}, v{X+1}
    v_fma_f32 v{X+1}, -v{X}, v{X}, v{X+1}
    v_max_f32 v{X+1}, 0, v{X+1}
    v_add_f32 v{X+1}, {f2u(1e-5)}, v{X+1}
    v_rsq_f32 v{rs}, v{X+1}
    v_mul_f32 v{nb}, v{X}, v{rs}
    """)
    for i in range(48): A(f"v_fma_f32 v{F+i}, v{F+i}, v{rs}, -v{nb}")
    wa = X + 4; PA = X + 8; PB = X + 12; u0 = X + 5; u1 = X + 6
    for i in range(3):
        A("s_waitcnt lgkmcnt(0)")
        for h in range(2):
            for e in range(8):
                f = F + 24 * h + 8 * i + e; m = MR + 8 * h + e
                A(f"v_and_b32 v{u0}, 0xffff0000, v{m}\nv_lshlrev_b32 v{u1}, 16, v{m}\nv_fma_f32 v{f}, v{f}, v{u0}, v{u1}")
        if i < 2: modread(i + 1)
        A(f"""
        v_add_u32 v{wa}, {12*i}, v{t12}
        v_mul_u32_u24 v{u0}, 57, v{wa}
        v_lshrrev_b32 v{u0}, 9, v{u0}
        v_mul_u32_u24 v{u0}, 279, v{u0}
        v_mul_u32_u24 v{u1}, 9, v{row}
        v_add3_u32 v{wa}, v{wa}, v{u0}, v{u1}
        v_lshlrev_b32 v{wa}, 4, v{wa}
        """)
        for e in range(0, 8, 2):
            f0 = F + 8 * i + e; f1 = f0 + 24
            A(f"""
            v_add_f32 v{u0}, v{f0}, v{f1}
            v_add_f32 v{u1}, v{f0+1}, v{f1+1}
            v_cvt_pk_bf16_f32 v{PA+e//2}, v{u0}, v{u1}
            v_sub_f32 v{u0}, v{f0}, v{f1}
            v_sub_f32 v{u1}, v{f0+1}, v{f1+1}
            v_cvt_pk_bf16_f32 v{PB+e//2}, v{u0}, v{u1}
            """)
        A(f"ds_write_b128 v{wa}, {vr(PA,4)}\nds_write_b128 v{wa}, {vr(PB,4)} offset:18432")
        if i < 2: A("s_nop 1")
    A(f"""
    v_mul_u32_u24 v{vx}, 288, v{g}
    v_mul_u32_u24 v{tmp}, 9, v{n}
    v_add_lshl_u32 v{vx}, v{vx}, v{tmp}, 4
    s_mul_i32 s38, s37, 18432
    v_add_u32 v{vx}, s38, v{vx}
    s_waitcnt lgkmcnt(0)
    s_barrier
    """)
    A.stamp(4)
    A("s_waitcnt lgkmcnt(0)" if A.STAMP else "")
    AF = F
    assert MR == F + 48
    ZR, ZI = X, X + 8
    def rd(t):
        for mt in range(2): A(f"ds_read_b128 {vr(AF+8*t+4*mt,4)}, v{vx} offset:{2304*mt+16*t}")
    for t in range(6): rd(t)
    for t in range(9):
        issued = min(9, t + 6)
        A(f"s_waitcnt lgkmcnt({2*(issued-t-1)})")
        for mt in range(2):
            c0 = "0" if t == 0 else vr(ZR + 4 * mt, 4); c1 = "0" if t == 0 else vr(ZI + 4 * mt, 4)
            A(f"v_mfma_f32_16x16x32_bf16 {vr(ZR+4*mt,4)}, {vr(AF+8*t+4*mt,4)}, {vr(TC+4*t,4)}, {c0}")
            A(f"v_mfma_f32_16x16x32_bf16 {vr(ZI+4*mt,4)}, {vr(AF+8*t+4*mt,4)}, {vr(TS+4*t,4)}, {c1}")
        if t + 6 < 9: rd(t + 6)
    ZB = TC; O = TC + 8; ZN = TC + 24
    A(f"""
    v_mul_u32_u24 v{vx}, {2*18*4096}, v{g}
    v_lshl_add_u32 v{vx}, v{n}, 2, v{vx}
    s_lshl_b32 s38, s36, 12
    s_lshl_b32 s39, s16, 6
    s_add_u32 s38, s38, s39
    v_add_u32 v{tmp2}, s36, v{n}
    v_cmp_eq_u32 vcc, 0, v{tmp2}
    v_mov_b32 v{tmp}, 0xffff
    v_cndmask_b32 v{tmp}, -1, v{tmp}, vcc
    """)
    for i in range(8): A(f"v_cvt_pk_bf16_f32 v{ZN+i}, v{ZR+i}, v{ZI+i}")
    for i in range(8): A(f"v_and_b32 v{ZB+i}, v{ZN+i}, v{tmp}")
    def sstep(zb):
        for mt in range(2):
            for ot in range(4):
                c = "0" if mt == 0 else vr(O + 4 * ot, 4)
                A(f"v_mfma_f32_16x16x32_bf16 {vr(O+4*ot,4)}, {vr(M+4*(2*ot+mt),4)}, {vr(zb+4*mt,4)}, {c}")
    sstep(ZB)
    for ot in range(4):
        for e in range(2):
            A(f"v_cvt_pk_bf16_f32 v{TS+2*ot+e}, v{O+4*ot+2*e}, v{O+4*ot+2*e+1}")
            A(f"s_add_u32 s39, s38, {(8*ot+e)*18*4096}")
            A(f"buffer_store_dword v{TS+2*ot+e}, v{vx}, s[32:35], s39 offen")
    A.stamp(5)
    A(f"""
    s_cmp_lg_u32 s36, 0
    s_cbranch_scc1 K1_fin
    """)
    for i in range(8): A(f"v_lshrrev_b32 v{ZN+i}, 16, v{ZN+i}")
    sstep(ZN)
    A(f"""
    v_lshlrev_b32 v{vx}, 3, v{g}
    s_lshl_b32 s38, s16, 6
    v_cmp_eq_u32 vcc, 0, v{n}
    s_and_saveexec_b64 s[40:41], vcc
    """)
    for ot in range(4):
        for e in range(2):
            A(f"v_cvt_pk_bf16_f32 v{TS+8+2*ot+e}, v{O+4*ot+2*e}, v{O+4*ot+2*e+1}")
            A(f"s_add_u32 s39, s38, {(576+(ot>>1))*4096 + (8*(ot&1)+e)*4}")
            A(f"buffer_store_dword v{TS+8+2*ot+e}, v{vx}, s[32:35], s39 offen")
    A("K1_fin:")
    A("s_waitcnt vmcnt(0)" if A.STAMP else "")
    A.stamp_flush(1, 6)
    A("K1_end:\ns_endpgm")
    A.end(name, R.hi, 48)

def gen_M(A, M, n, g, F, mode):
    if mode == "k1":
        k1f, c4, sf = F, F + 4, F + 5
        A(f"""
        v_lshrrev_b32 v{k1f}, 1, v{n}
        v_cvt_f32_u32 v{k1f}, v{k1f}
        v_and_b32 v{c4}, 1, v{n}
        v_cvt_f32_u32 v{c4}, v{c4}
        v_mul_f32 v{c4}, 0x3e800000, v{c4}
        v_lshl_add_u32 v{sf}, v{g}, 8, s16
        v_cvt_f32_u32 v{sf}, v{sf}
        v_mul_f32 v{sf}, {f2u(1/2048)}, v{sf}
        """)
        for ot in range(1, 4): A(f"v_add_f32 v{k1f+ot}, {f2u(8.0*ot)}, v{k1f}")
        for q in range(1, 8): A(f"v_add_f32 v{sf+q}, {f2u((16*(q>>2)+(q&3))/32)}, v{sf}")
        T = F + 16; idx = 0
        for ot in range(4):
            for q in range(0, 8, 2):
                b = T + 6 * (idx % 2); idx += 1
                d = M + ot * 8 + q
                A(f"""
                v_fma_f32 v{b}, v{k1f+ot}, v{sf+q}, v{c4}
                v_fma_f32 v{b+1}, v{k1f+ot}, v{sf+q+1}, v{c4}
                v_cos_f32 v{b+2}, v{b}
                v_sin_f32 v{b+3}, v{b}
                v_cos_f32 v{b+4}, v{b+1}
                v_sin_f32 v{b+5}, v{b+1}
                v_cvt_pk_bf16_f32 v{d}, v{b+2}, v{b+3}
                v_cvt_pk_bf16_f32 v{d+1}, v{b+4}, v{b+5}
                """)
    else:
        sf, gf = F, F + 2
        A(f"""
        v_lshl_add_u32 v{sf}, v{n}, 6, s16
        v_cvt_f32_u32 v{sf}, v{sf}
        v_mul_f32 v{sf}, {f2u(1/2048)}, v{sf}
        v_add_f32 v{sf+1}, 0.5, v{sf}
        v_cvt_f32_u32 v{gf}, v{g}
        v_mul_f32 v{gf+1}, v{gf}, v{sf+1}
        v_mul_f32 v{gf}, v{gf}, v{sf}
        """)
        T = F + 4; idx = 0
        for nt in range(2):
            for q in range(8):
                b = T + 3 * (idx % 2); idx += 1
                A(f"""
                v_fmamk_f32 v{b}, v{sf+nt}, {f2u(4.0*q)}, v{gf+nt}
                v_cos_f32 v{b+1}, v{b}
                v_sin_f32 v{b+2}, v{b}
                v_cvt_pk_bf16_f32 v{M+nt*16+q}, v{b+1}, v{b+2}
                v_cvt_pk_bf16_f32 v{M+nt*16+8+q}, -v{b+2}, v{b+1}
                """)

def k2(A, touch_arg=40):
    name = "k2_kernel"
    A.launch.append((name, 578, 64, 0))
    A.begin(name)
    SC = 1.0 / (2048 * 576)
    R = RA(1)
    n, g, vd, vw, vo, tmp, vs, vs2 = [R() for _ in range(8)]
    TO = R(2)
    D = R(16, 4); WR = R(16, 4); WI = R(16, 4); X = R(32, 4); FR = R(128, 4)
    A(f"""
    s_cmp_ge_u32 s2, 578
    s_cbranch_scc1 K2_end
    """)
    A.stamp(0)
    A(f"""
    s_load_dwordx4 s[4:7], s[0:1], 8
    s_load_dwordx2 s[8:9], s[0:1], 88
    s_load_dwordx2 s[10:11], s[0:1], {touch_arg}
    v_and_b32 v{n}, 15, v0
    v_lshrrev_b32 v{g}, 4, v0
    v_lshlrev_b32 v{vd}, 2, v0
    s_mul_i32 s12, s2, 3641
    s_lshr_b32 s12, s12, 16         ; k1
    s_mul_i32 s13, s12, 18
    s_sub_u32 s13, s2, s13          ; ct
    s_cmp_ge_u32 s13, 9
    s_cselect_b32 s14, 1, 0         ; p
    s_mul_i32 s15, s14, 9
    s_sub_u32 s15, s13, s15         ; ct'
    s_lshl_b32 s15, s15, 6
    s_lshl_b32 s14, s14, 1
    s_add_u32 s15, s15, s14
    s_mul_i32 s14, s12, 578
    s_add_u32 s15, s15, s14
    s_lshl_b32 s16, s13, 11
    s_lshl_b32 s17, s12, 6
    s_add_u32 s16, s16, s17
    s_mov_b32 s17, 4                ; W n-stride
    s_mov_b32 s18, {f2u(2*SC)}
    s_mov_b32 s19, {f2u(2*SC)}
    s_waitcnt lgkmcnt(0)
    s_cmp_lt_u32 s2, 576
    s_cbranch_scc1 K2_reg
    s_sub_u32 s14, s2, 576
    s_mul_i32 s15, s14, {16*578}
    s_add_u32 s15, s15, 576
    s_lshl_b32 s16, s14, 6
    s_add_u32 s16, s16, 36864
    s_mov_b32 s17, 578
    s_mov_b32 s18, {f2u(SC)}
    s_mov_b32 s19, {f2u(-SC)}
    s_mov_b32 s13, 1
    s_mov_b64 s[36:37], s[4:5]
    s_mov_b64 s[4:5], s[6:7]
    s_mov_b64 s[6:7], s[36:37]
    K2_reg:
    """)
    A.srd(20, 4, WRB); A.srd(24, 6, WRB); A.srd(28, 8, A_BYTES, WS_A); A.srd(32, 8, B_BYTES, WS_B); A.srd(40, 10, WB)
    A(f"""
    s_lshl_b32 s3, s2, 12
    v_mul_u32_u24 v{vw}, {32*578}, v{g}
    v_mul_lo_u32 v{tmp}, v{n}, s17
    v_add_u32 v{vw}, v{vw}, v{tmp}
    """)
    for q in range(16): A(f"buffer_load_dword v{D+q}, v{vd}, s[28:31], s3 offen offset:{256*q}")
    for q in range(16):
        A(f"buffer_load_ushort v{WR+q}, v{vw}, s[20:23], s15 offen")
        A(f"buffer_load_ushort v{WI+q}, v{vw}, s[24:27], s15 offen")
        if q < 15: A(f"s_add_u32 s15, s15, {128*578}")
    A(f"""
    v_lshlrev_b32 v{tmp}, 7, v0
    s_lshl_b32 s3, s2, 14
    s_add_u32 s38, s3, 8192
    buffer_load_dword v{TO}, v{tmp}, s[40:43], s3 offen
    buffer_load_dword v{TO+1}, v{tmp}, s[40:43], s38 offen
    """)
    A.stamp(1)
    of, af, c4, mg, mo, mgo = X, X + 4, X + 12, X + 13, X + 14, X + 15
    T = X + 16
    A(f"""
    v_bfe_u32 v{of}, v{n}, 1, 1
    v_lshrrev_b32 v{tmp}, 2, v{n}
    v_lshl_add_u32 v{of}, v{of}, 2, v{tmp}
    v_cvt_f32_u32 v{of}, v{of}
    v_mul_f32 v{of}, {f2u(1/64)}, v{of}
    v_cvt_f32_u32 v{af}, v{g}
    v_and_b32 v{c4}, 1, v{n}
    v_cvt_f32_u32 v{c4}, v{c4}
    v_mul_f32 v{c4}, 0x3e800000, v{c4}
    v_and_b32 v{mg}, 1, v{g}
    v_and_b32 v{mo}, 1, v{tmp}
    s_mov_b32 s38, 0x80008000
    v_mul_lo_u32 v{mg}, v{mg}, s38
    v_mul_lo_u32 v{mo}, v{mo}, s38
    v_xor_b32 v{mgo}, v{mg}, v{mo}
    """)
    for mt in range(1, 4): A(f"v_add_f32 v{of+mt}, {f2u(mt/8)}, v{of}")
    for q in range(1, 8): A(f"v_add_f32 v{af+q}, {f2u(4.0*q)}, v{af}")
    fr = lambda mt, t, r=0: FR + (mt * 4 + t) * 4 + r
    idx = 0
    for mt in range(4):
        for q in range(0, 8, 2):
            b = T + 6 * (idx % 2); idx += 1
            d = fr(mt, q >> 2, q & 3)
            A(f"""
            v_fma_f32 v{b}, v{of+mt}, v{af+q}, v{c4}
            v_fma_f32 v{b+1}, v{of+mt}, v{af+q+1}, v{c4}
            v_cos_f32 v{b+2}, v{b}
            v_sin_f32 v{b+3}, v{b}
            v_cos_f32 v{b+4}, v{b+1}
            v_sin_f32 v{b+5}, v{b+1}
            v_cvt_pk_bf16_f32 v{d}, v{b+2}, v{b+3}
            v_cvt_pk_bf16_f32 v{d+1}, v{b+4}, v{b+5}
            """)
            for e in range(2):
                A(f"v_xor_b32 v{d+e+8}, v{d+e}, v{mo}\nv_xor_b32 v{d+e+64}, v{d+e}, v{mg}\nv_xor_b32 v{d+e+72}, v{d+e}, v{mgo}")
    A(f"""
    v_add_u32 v{tmp}, s13, v{n}
    v_cmp_eq_u32 vcc, 0, v{tmp}
    v_mov_b32 v{tmp}, 0.5
    v_cndmask_b32 v{tmp}, 1.0, v{tmp}, vcc
    v_mul_f32 v{vs}, s18, v{tmp}
    v_mul_f32 v{vs2}, s19, v{tmp}
    v_mul_u32_u24 v{vo}, {B_STRIDE}, v{g}
    v_lshl_add_u32 v{vo}, v{n}, 2, v{vo}
    """)
    def dft(first):
        for t in range(4):
            if first: A(f"s_waitcnt vmcnt({34+4*(3-t)})")
            for mt in range(8):
                c = "0" if t == 0 else vr(X + 4 * mt, 4)
                A(f"v_mfma_f32_16x16x32_bf16 {vr(X+4*mt,4)}, {vr(fr(mt,t),4)}, {vr(D+4*t,4)}, {c}")
    A.stamp(2)
    dft(True)
    A.stamp(3)
    A("s_waitcnt vmcnt(2)")
    A.stamp(4)
    for q in range(16):
        A(f"v_lshlrev_b32 v{WR+q}, 16, v{WR+q}\nv_lshlrev_b32 v{WI+q}, 16, v{WI+q}")
        A(f"v_mul_f32 v{WR+q}, v{WR+q}, v{vs}\nv_mul_f32 v{WI+q}, v{WI+q}, v{vs2}")
    for q in range(16):
        xr, xi = X + 2 * q, X + 2 * q + 1
        A(f"""
        v_mul_f32 v{tmp}, v{xr}, v{WR+q}
        v_mul_f32 v{vd}, v{xr}, v{WI+q}
        v_fma_f32 v{tmp}, -v{xi}, v{WI+q}, v{tmp}
        v_fmac_f32 v{vd}, v{xi}, v{WR+q}
        v_cvt_pk_bf16_f32 v{D+q}, v{tmp}, -v{vd}
        """)
    dft(False)
    for q in range(16):
        A(f"v_cvt_pk_bf16_f32 v{WR+q}, v{X+2*q}, v{X+2*q+1}")
        A(f"buffer_store_dword v{WR+q}, v{vo}, s[32:35], s16 offen")
        if q < 15: A(f"s_add_u32 s16, s16, {4*B_STRIDE}")
    A.stamp(5)
    A("s_waitcnt vmcnt(0)" if A.STAMP else "")
    A.stamp_flush(2, 6)
    A("K2_end:\ns_endpgm")
    A.end(name, R.hi, 48)


def cheb(A, X, Y, Sc, ST, T, emit, sneg=False):
    A(f"s_mov_b32 s58, {f2u(576.0)}")
    C = [ST, ST + 16]; S = [ST + 8, ST + 24]
    cm, cc = T + 6, T + 7
    prods = [0, 1, Sc, Sc + 1]
    for i, o in enumerate(prods):
        if o == 0: A(f"v_mul_f32 v{T+i}, v{X}, v{Y}")
        else: A(f"v_fmamk_f32 v{T+i}, v{X}, {f2u(o)}, v{T}")
    A(f"v_mul_f32 v{T+4}, {f2u(Sc)}, v{X}")
    for i in range(5): A(f"v_mul_f32 v{ST+2+i}, {f2u(1/576)}, v{T+i}")
    for i in range(5): A(f"v_floor_f32 v{ST+2+i}, v{ST+2+i}")
    for i in range(5): A(f"v_fma_f32 v{T+i}, -v{ST+2+i}, s58, v{T+i}")
    for i in range(5): A(f"v_mul_f32 v{T+i}, {f2u(1/576)}, v{T+i}")
    A(f"v_mul_f32 v{T+5}, {f2u(1/576)}, v{X}")
    A(f"v_cos_f32 v{cm}, v{T+5}\nv_cos_f32 v{cc}, v{T+4}")
    for i in range(4):
        A(f"v_cos_f32 v{C[i>>1]+(i&1)}, v{T+i}")
        A(f"v_sin_f32_e64 v{S[i>>1]+(i&1)}, {'-' if sneg else ''}v{T+i}")
    A(f"v_add_f32 v{cm}, v{cm}, v{cm}\nv_add_f32 v{cc}, v{cc}, v{cc}")
    for m in range(2, 8):
        for b in (C[0], S[0], C[1], S[1]): A(f"v_fma_f32 v{b+m}, v{cm}, v{b+m-1}, -v{b+m-2}")
    for c in range(9):
        if c >= 2:
            for q in range(16): A(f"v_fma_f32 v{C[c&1]+q}, v{cc}, v{C[(c+1)&1]+q}, -v{C[c&1]+q}")
        emit(c, C[c & 1], S[c & 1])

def xgroup_sum(A, regs, t):
    for op in ("v_permlane32_swap_b32", "v_permlane16_swap_b32"):
        for i, r in enumerate(regs): A(f"v_mov_b32 v{t+i}, v{r}")
        for i, r in enumerate(regs): A(f"{op} v{r}, v{t+i}")
        for i, r in enumerate(regs): A(f"v_add_f32 v{r}, v{r}, v{t+i}")

def k3(A, NT=81):
    name = "k3_kernel"
    A.launch.append((name, 128 + NT, 576, 36864 + 1280))
    A.begin(name)
    A(f"""
    s_cmp_ge_u32 s2, 128
    s_cbranch_scc1 K3_touch
    """)
    A.stamp(0)
    R = RA(1)
    n, g, lane, vd, vx, tmp, tmp2 = [R() for _ in range(7)]
    DA = R(16, 4); DB = R(8, 4); XX = R(8, 4)
    MB = R(16, 4); TT = R(72, 4); U = R(36, 4); F = MB; GA = DA; CB = TT
    A(f"""
    s_load_dwordx2 s[4:5], s[0:1], 0
    s_load_dwordx2 s[8:9], s[0:1], 88
    v_lshrrev_b32 v{tmp}, 6, v0
    s_and_b32 s16, s2, 7
    s_lshr_b32 s17, s2, 4
    v_readfirstlane_b32 s15, v{tmp}  ; w = j
    s_lshl_b32 s16, s16, 3
    s_add_u32 s16, s16, s17          ; s2
    s_bfe_u32 s17, s2, 0x10003       ; nt
    v_and_b32 v{lane}, 63, v0
    v_and_b32 v{n}, 15, v0
    v_lshrrev_b32 v{g}, 4, v{lane}
    v_lshlrev_b32 v{vd}, 2, v{lane}
    s_mul_i32 s37, s16, {B_STRIDE}
    s_lshl_b32 s38, s15, 11
    s_add_u32 s38, s38, s37
    s_add_u32 s36, s38, {9*2048}
    v_mul_u32_u24 v{vx}, {64*1152}, v{n}
    v_lshl_add_u32 v{vx}, v{g}, 3, v{vx}
    s_lshl_b32 s39, s17, 10
    s_add_u32 s18, s39, s16          ; 1024*nt + s2
    s_mul_i32 s39, s18, 1152
    s_lshl_b32 s40, s15, 5
    s_add_u32 s39, s39, s40          ; x soffset
    s_lshl_b32 s41, s15, 6
    v_lshlrev_b32 v{tmp2}, 2, v{g}
    s_add_u32 s37, s37, 36864
    s_waitcnt lgkmcnt(0)
    """)
    A.srd(32, 8, B_BYTES, WS_B)
    for p in range(2):
        for q in range(8): A(f"buffer_load_dword v{DA+8*p+q}, v{vd}, s[32:35], s{38 if p == 0 else 36} offen offset:{256*q}")
    A("s_cmp_lg_u32 s15, 0\ns_cbranch_scc1 K3_nony")
    for q in range(8): A(f"buffer_load_dword v{DB+q}, v{tmp2}, s[32:35], s37 offen offset:{16*q}")
    A("K3_nony:")
    A.srd(20, 4, XB); A.srd(24, 8, 4608, WS_MOD + 2304); A.srd(44, 8, X1_BYTES, WS_X1); A.srd(48, 8, X1_BYTES, WS_H2)
    QO = [0, 288, 144, 432]
    for q in range(4): A(f"buffer_load_dwordx2 {vr(XX+2*q,2)}, v{vx}, s[20:23], s39 offen offset:{2*QO[q]}")
    A.stamp(1)
    X_, Y_ = U + 32, U + 33
    A(f"""
    s_lshl_b32 s42, s15, 4
    v_add_u32 v{X_}, s42, v{n}
    v_cvt_f32_u32 v{X_}, v{X_}
    v_lshlrev_b32 v{Y_}, 3, v{g}
    v_cvt_f32_u32 v{Y_}, v{Y_}
    """)
    def emit(c, C, S):
        for m in range(8): A(f"v_cvt_pk_bf16_f32 v{TT+4*(9*(m&1)+c)+(m>>1)}, v{C+m}, v{S+m}")
    cheb(A, X_, Y_, 32, U, F, emit)
    sf, gf = U + 32, U + 33
    A(f"""
    v_lshl_add_u32 v{sf}, v{n}, 6, s18
    v_cvt_f32_u32 v{sf}, v{sf}
    v_mul_f32 v{sf}, {f2u(1/2048)}, v{sf}
    v_cvt_f32_u32 v{gf}, v{g}
    v_mul_f32 v{gf}, v{gf}, v{sf}
    """)
    for q in range(8): A(f"v_fmamk_f32 v{U+q}, v{sf}, {f2u(4.0*q)}, v{gf}")
    for q in range(8): A(f"v_cos_f32 v{U+8+q}, v{U+q}\nv_sin_f32 v{U+16+q}, v{U+q}")
    for q in range(8): A(f"v_cvt_pk_bf16_f32 v{MB+q}, v{U+8+q}, v{U+16+q}\nv_cvt_pk_bf16_f32 v{MB+8+q}, -v{U+16+q}, v{U+8+q}")
    A(f"""
    v_lshlrev_b32 v{tmp}, 31, v{n}
    v_xor_b32 v{tmp}, 0x3f803f80, v{tmp}
    v_cmp_gt_u32 vcc, 16, v{lane}
    v_cndmask_b32 v{TT}, v{TT}, v{tmp}, vcc
    v_add_u32 v{tmp}, s15, v{n}
    v_cmp_eq_u32 vcc, 0, v{tmp}
    v_lshlrev_b32 v{vd}, 4, v{lane}
    s_lshl_b32 s42, s15, 10
    v_add_u32 v{tmp}, s42, v{vd}
    """)
    A.stamp(2)
    A("s_waitcnt vmcnt(4)")
    A.stamp(3)
    for q in range(8): A(f"v_cndmask_b32 v{DB+q}, v{DA+q}, v{DB+q}, vcc")
    for t in range(2):
        for p in (1, 0):
            for c in range(2):
                d = U + 8 * p + 4 * c
                a = DB + 4 * t if (p == 0 and c == 1) else DA + 8 * p + 4 * t
                A(f"v_mfma_f32_16x16x32_bf16 {vr(d,4)}, {vr(a,4)}, {vr(MB+8*c+4*t,4)}, {'0' if t == 0 else vr(d,4)}")
    A(f"v_lshlrev_b32 v{tmp2}, 4, v{g}")
    for q in range(4): A(f"buffer_load_dwordx4 {vr(GA+4*q,4)}, v{tmp2}, s[24:27], s41 offen offset:{2304+4*QO[q]}")
    for p in (1, 0):
        re, im = U + 8 * p, U + 8 * p + 4
        o = U + 16 + 8 * p
        for r in range(4): A(f"v_cvt_pk_bf16_f32 v{o+r}, v{re+r}, v{im+r}")
        A(f"ds_write_b128 v{tmp}, {vr(o,4)} offset:{9216*p}")
        for r in range(4):
            if p == 0: A(f"v_mov_b32 v{o+4+r}, v{o+r}" if r % 2 == 0 else f"v_xor_b32 v{o+4+r}, 0x80008000, v{o+r}")
            elif r % 2 == 0: A(f"v_cvt_pk_bf16_f32 v{o+4+r}, v{im+r}, -v{re+r}")
            else: A(f"v_cvt_pk_bf16_f32 v{o+4+r}, -v{im+r}, v{re+r}")
        A(f"ds_write_b128 v{tmp}, {vr(o+4,4)} offset:{18432+9216*p}")
    A("s_waitcnt lgkmcnt(0)\ns_barrier")
    A.stamp(4)
    A("s_waitcnt lgkmcnt(0)" if A.STAMP else "")
    ACC = MB; XF = TT + 36
    NB = 8
    order = [(ct, v) for c in range(9) for ct in (c, c + 9) for v in range(2)]
    def rd(i): A(f"ds_read_b128 {vr(U+4*(i%NB),4)}, v{vd} offset:{1024*order[i][0]+18432*order[i][1]}")
    for i in range(NB): rd(i)
    for i in range(36):
        ct, v = order[i]
        issued = min(36, i + NB)
        A(f"s_waitcnt lgkmcnt({issued-i-1})")
        d = ACC + 8 * v + 4 * (ct // 9)
        A(f"v_mfma_f32_16x16x32_bf16 {vr(d,4)}, {vr(TT+4*ct,4)}, {vr(U+4*(i%NB),4)}, {'0' if ct % 9 == 0 else vr(d,4)}")
        if i + NB < 36: rd(i + NB)
        if i == 17:
            for q in range(4): A(f"buffer_load_dwordx4 {vr(CB+4*q,4)}, v{tmp2}, s[24:27], s41 offen offset:{4*QO[q]}")
        if i == 24:
            A("s_waitcnt vmcnt(4)")
            for k in range(16): A(f"v_lshlrev_b32 v{GA+k}, 16, v{GA+k}")
            for k in range(16): A(f"v_lshlrev_b32 v{XF+k}, 16, v{XX+k//2}" if k % 2 == 0 else f"v_and_b32 v{XF+k}, 0xffff0000, v{XX+k//2}")
    A(f"""
    s_lshl_b32 s42, s16, 1
    s_add_u32 s42, s42, s17
    s_mul_i32 s42, s42, {18*1024}
    s_lshl_b32 s43, s15, 10
    s_add_u32 s42, s42, s43
    s_add_u32 s43, s42, {9*1024}
    v_mul_u32_u24 v{vx}, 80, v{n}
    v_lshl_add_u32 v{tmp2}, s15, 3, v{vx}
    """)
    Y = TT + 16; su, sq = DB, DB + 1
    for q in range(4):
        v, h = q >> 1, q & 1
        for r in range(4):
            A(f"v_{'add' if h == 0 else 'sub'}_f32 v{Y+4*q+r}, v{ACC+8*v+r}, v{ACC+8*v+4+r}")
    for k in range(16): A(f"v_fma_f32 v{Y+k}, v{Y+k}, v{GA+k}, v{XF+k}")
    A(f"v_add_f32 v{su}, v{Y}, v{Y+1}\nv_mul_f32 v{sq}, v{Y}, v{Y}\nv_fmac_f32 v{sq}, v{Y+1}, v{Y+1}")
    for k in range(2, 16): A(f"v_add_f32 v{su}, v{su}, v{Y+k}\nv_fmac_f32 v{sq}, v{Y+k}, v{Y+k}")
    xgroup_sum(A, [su, sq], DB + 2)
    A(f"ds_write_b64 v{tmp2}, {vr(su,2)} offset:36864")
    for v in range(2):
        o = U + 4 * v
        for q in range(4): A(f"v_cvt_pk_bf16_f32 v{o+q}, v{Y+8*v+2*q}, v{Y+8*v+2*q+1}")
        A(f"buffer_store_dwordx4 {vr(o,4)}, v{vd}, s[44:47], s{42+v} offen")
    SB = GA
    A("s_waitcnt vmcnt(2)")
    for k in range(16): A(f"v_lshlrev_b32 v{SB+k}, 16, v{CB+k}\nv_and_b32 v{CB+k}, 0xffff0000, v{CB+k}")
    A("s_waitcnt lgkmcnt(0)\ns_barrier")
    Q = U + 16
    for q in range(4): A(f"ds_read_b128 {vr(Q+4*q,4)}, v{vx} offset:{36864+16*q}")
    A(f"ds_read_b64 {vr(Q+16,2)}, v{vx} offset:{36864+64}")
    A("s_waitcnt lgkmcnt(0)")
    for q in range(1, 9): A(f"v_add_f32 v{Q}, v{Q}, v{Q+2*q}\nv_add_f32 v{Q+1}, v{Q+1}, v{Q+2*q+1}")
    rs, nb = Q + 2, Q + 3
    A(f"""
    v_mul_f32 v{Q}, {f2u(1/576)}, v{Q}
    v_mul_f32 v{Q+1}, {f2u(1/576)}, v{Q+1}
    v_fma_f32 v{Q+1}, -v{Q}, v{Q}, v{Q+1}
    v_max_f32 v{Q+1}, 0, v{Q+1}
    v_add_f32 v{Q+1}, {f2u(1e-5)}, v{Q+1}
    v_rsq_f32 v{rs}, v{Q+1}
    v_mul_f32 v{nb}, v{Q}, v{rs}
    """)
    for k in range(16): A(f"v_fma_f32 v{Y+k}, v{Y+k}, v{rs}, -v{nb}")
    for k in range(16): A(f"v_fma_f32 v{Y+k}, v{Y+k}, v{CB+k}, v{SB+k}")
    for v in range(2):
        o = U + 8 + 4 * v
        for q in range(4): A(f"v_cvt_pk_bf16_f32 v{o+q}, v{Y+8*v+2*q}, v{Y+8*v+2*q+1}")
        A(f"buffer_store_dwordx4 {vr(o,4)}, v{vd}, s[48:51], s{42+v} offen")
    A.stamp(5)
    A("s_waitcnt vmcnt(0)" if A.STAMP else "")
    A.stamp_flush(3, 6)
    A("s_endpgm\nK3_touch:")
    touch(A, 128, NT, 576, [48], "K3")
    A.end(name, R.hi, 64)

def touch(A, first, NT, nthreads, args, tag, nbytes=WB):
    lines = -(-nbytes // 128)
    per = -(-lines // (NT * nthreads)) if NT else 0
    A(f"s_cmp_ge_u32 s2, {first+NT}\ns_cbranch_scc1 {tag}_tend")
    if NT:
        for i, a in enumerate(args): A(f"s_load_dwordx2 s[{4+2*i}:{5+2*i}], s[0:1], {a}")
        A(f"s_sub_u32 s3, s2, {first}\ns_mul_i32 s3, s3, {nthreads*128*per}\nv_lshlrev_b32 v1, 7, v0\ns_waitcnt lgkmcnt(0)")
        for i, a in enumerate(args): A.srd(12 + 4 * i, 4 + 2 * i, nbytes)
        k = 2
        for q in range(per):
            for i, a in enumerate(args):
                A(f"buffer_load_dword v{k}, v1, s[{12+4*i}:{15+4*i}], s3 offen"); k += 1
            if q < per - 1: A(f"s_add_u32 s3, s3, {nthreads*128}")
        A("s_waitcnt vmcnt(0)")
    A(f"{tag}_tend:\ns_endpgm")
```

```python
from asmlib import *
from gen_front import *
import numpy as np

def part_to_rows(u16, R):
    a = R.bf16_to_f32(u16).reshape(64, 2, 18, 4, 16, 2, 4)
    return a.transpose(1, 4, 0, 2, 5, 3, 6).reshape(2048, 576)

def k4(A, RING=11, SL=3, prio=False):
    name = "k4_kernel"
    HHB = RING * 8192
    A.launch.append((name, 256, 512, HHB + 73728))
    A.begin(name)
    units = [("F1", c, j) for c in range(4) for j in range(18)] + [("H1", j2, 0) for j2 in range(9)] \
          + [("F2", dc, k) for dc in range(4) for k in range(9)] + [("H2", u2, 0) for u2 in range(5)]
    NU = len(units)
    U_H1, U_F2, U_H2 = 72, 81, 117
    R = RA(1)
    vF, vH, v2, vl16, aH2, aHW, aHR, aHW2, tmp, aH2h = [R() for _ in range(10)]
    aF = [[R(), R()], [R(), R()]]
    aH = [R(), R()]
    H2 = R(144, 4); ACC = R(32, 4); AB = R(32, 4)
    HHR = H2 + 56; ACC2 = H2; STB = H2 + 32
    HI = 6 * 8192
    A(f"""
    s_cmp_ge_u32 s2, 256
    s_cbranch_scc1 K4_end
    """)
    A.stamp(0)
    A(f"""
    s_load_dwordx4 s[4:7], s[0:1], 32
    s_load_dwordx2 s[8:9], s[0:1], 48
    s_load_dwordx2 s[10:11], s[0:1], 88
    v_lshrrev_b32 v{tmp}, 6, v0
    v_and_b32 v{vl16}, 63, v0
    s_and_b32 s12, s2, 7
    v_readfirstlane_b32 s15, v{tmp}      ; w
    s_lshl_b32 s12, s12, 1
    s_bfe_u32 s13, s2, 0x10003           ; odd
    s_add_u32 s12, s12, s13              ; fs
    s_lshr_b32 s14, s2, 4                ; rb
    s_and_b32 s16, s15, 3                ; rg
    s_lshr_b32 s17, s15, 2               ; p
    s_lshl_b32 s18, s15, 10              ; w*1024
    s_lshr_b32 s40, s16, 1
    s_and_b32 s41, s16, 1
    s_mul_i32 s42, s40, {288*9216}
    s_mul_i32 s43, s41, {8*9216}
    s_add_u32 s36, s42, s43
    s_mul_i32 s44, s12, 576
    s_add_u32 s36, s36, s44
    s_lshl_b32 s45, s13, 6
    s_add_u32 s36, s36, s45              ; baseF
    s_mul_i32 s42, s41, {288*9216}
    s_mul_i32 s43, s40, {16*9216}
    s_add_u32 s37, s42, s43
    s_add_u32 s37, s37, s44
    s_xor_b32 s45, s13, 1
    s_lshl_b32 s45, s45, 9
    s_add_u32 s37, s37, s45              ; baseH
    s_mul_i32 s38, s12, {288*1152}
    s_mul_i32 s42, s16, {8*1152}
    s_add_u32 s38, s38, s42
    s_mul_i32 s42, s17, {32*1152}
    s_add_u32 s39, s38, s42
    s_add_u32 s39, s39, 1024             ; base2h
    s_lshl_b32 s42, s17, 7
    s_add_u32 s38, s38, s42              ; base2
    s_lshl_b32 s46, s14, 2
    s_add_u32 s46, s46, s16
    s_mul_i32 s47, s46, {36*1024}
    s_mul_i32 s42, s17, {18*1024}
    s_add_u32 s46, s47, s42
    s_lshl_b32 s42, s17, 10
    s_add_u32 s47, s47, s42
    v_lshrrev_b32 v{tmp}, 3, v{vl16}
    v_bfe_u32 v{aH2}, v{vl16}, 4, 2
    v_lshlrev_b32 v{aH2}, 1, v{aH2}
    v_and_b32 v{aHW}, 7, v{vl16}
    v_xor_b32 v{aH2}, v{aH2}, v{aHW}
    v_lshlrev_b32 v{aH2}, 4, v{aH2}
    v_mul_u32_u24 v{vF}, 9216, v{tmp}
    v_add_u32 v{vF}, v{vF}, v{aH2}
    v_mul_u32_u24 v{v2}, 1152, v{tmp}
    v_add_u32 v{v2}, v{v2}, v{aH2}
    v_lshrrev_b32 v{tmp}, 2, v{vl16}
    v_mul_u32_u24 v{vH}, 9216, v{tmp}
    v_bfe_u32 v{aH2}, v{vl16}, 4, 1
    v_lshlrev_b32 v{aH2}, 1, v{aH2}
    v_and_b32 v{aHW}, 3, v{vl16}
    v_xor_b32 v{aH2}, v{aH2}, v{aHW}
    v_lshl_add_u32 v{vH}, v{aH2}, 4, v{vH}
    v_bfe_u32 v{aH2}, v{vl16}, 3, 2      ; (row>>1)&3
    s_lshl_b32 s42, s17, 1
    v_xor_b32 v{aH2}, s42, v{aH2}
    v_lshlrev_b32 v{aH2}, 5, v{aH2}
    v_lshl_add_u32 v{aH2}, v{tmp}, 7, v{aH2}
    v_lshl_add_u32 v{aF[0][0]}, v{aHW}, 3, v{aH2}
    v_xor_b32 v{aF[0][1]}, 32, v{aF[0][0]}
    v_add_u32 v{aF[1][0]}, {HI}, v{aF[0][0]}
    v_add_u32 v{aF[1][1]}, {HI}, v{aF[0][1]}
    v_bfe_u32 v{aH2}, v{vl16}, 4, 1
    v_xor_b32 v{aH2}, s17, v{aH2}
    v_lshlrev_b32 v{aH2}, 5, v{aH2}
    v_lshl_add_u32 v{aH2}, v{tmp}, 6, v{aH2}
    v_lshl_add_u32 v{aH[0]}, v{aHW}, 3, v{aH2}
    v_add_u32 v{aH[1]}, {HI}, v{aH[0]}
    v_lshlrev_b32 v{vl16}, 4, v{vl16}
    s_lshl_b32 s42, s16, 10
    s_add_u32 s42, s42, {HHB}
    v_add_u32 v{aH2}, s42, v{vl16}
    v_add_u32 v{aH2h}, 65536, v{aH2}
    s_lshl_b32 s42, s16, 11
    s_add_u32 s42, s42, {HHB}
    v_add_u32 v{aHR}, s42, v{vl16}
    s_lshl_b32 s43, s17, 13
    v_add_u32 v{aHW}, s43, v{aHR}
    s_lshl_b32 s43, s17, 3
    s_add_u32 s43, s43, 65536
    v_add_u32 v{aHW2}, s43, v{aHR}
    s_mul_i32 s57, s13, {32*1152}
    s_xor_b32 s58, s13, 1
    s_mul_i32 s58, s58, {8*32*1152}
    s_waitcnt lgkmcnt(0)
    s_cmp_eq_u32 s17, 0
    s_cselect_b32 s4, s4, s6
    s_cselect_b32 s5, s5, s7
    """)
    A.srd(20, 4, WB); A.srd(24, 8, WB); A.srd(28, 10, X1_BYTES, WS_H2)
    A(f"s_mul_i32 s42, s12, {X1_BYTES}\ns_add_u32 s10, s10, s42\ns_addc_u32 s11, s11, 0")
    A.srd(32, 10, X1_BYTES, WS_P)
    A(f"""
    s_add_u32 s50, s38, s57
    s_add_u32 s51, s38, s58
    s_add_u32 s52, s39, s57
    """)
    A(f"""
    s_mul_i32 s42, s17, {32*1152}
    s_sub_u32 s53, s39, s42
    s_add_u32 s53, s53, s58
    """)
    vq = []; lq = []
    def dma(u):
        t, a, b = units[u]
        if t == "F1": base, off, srd, vo = 36, b * 147456 + a * 128, 20, vF
        elif t == "H1": base, off, srd, vo = 37, a * 2 * 147456, 20, vH
        elif t == "F2": base, off, srd, vo = (50, b * 36864 + a * 256, 24, v2) if b < 8 else (51, a * 256, 24, v2)
        else: base, off, srd, vo = (52, a * 2 * 36864, 24, v2) if a < 4 else (53, 0, 24, v2)
        A(f"s_add_u32 m0, s18, {(u % RING) * 8192}\ns_add_u32 s48, s{base}, {off}")
        A(f"buffer_load_dwordx4 v{vo}, s[{srd}:{srd+3}], s48 offen lds")
        vq.append(("w", u))
    NH = 9
    def dma_h2(j):
        A(f"s_add_u32 m0, s18, {HHB + (j % NH) * 8192}\ns_add_u32 s48, s46, {j*1024}")
        A(f"buffer_load_dwordx4 v{vl16}, s[28:31], s48 offen lds")
        vq.append(("h", j))
    def wait(q, tags, cnt, mx):
        idx = [i for i, t in enumerate(q) if t in tags]
        if not idx: return
        n = len(q) - 1 - max(idx)
        del q[:max(idx) + 1]
        if n <= mx: A(f"s_waitcnt {cnt}({n})")
        else: A(f"s_waitcnt {cnt}({mx})")
    def frags(u):
        t, a, b = units[u]
        if t == "H2" and a == 4: return [0, 1]
        return [0, 1, 2, 3]
    def read_ops(u):
        t, a, b = units[u]
        ops = []
        ub = (u % RING) * 8192; hi = 1 if ub >= HI else 0; ub -= hi * HI
        buf = AB + 16 * (u % 2)
        def mk(f, half):
            if t == "H1": addr, off = aH[hi], ub + ((f & 1) * 4 + (f >> 1) * 2 + half) * 1024
            else: addr, off = aF[hi][f & 1], ub + (f >> 1) * 4096 + half * 2048
            def go():
                A(f"ds_read_b64_tr_b16 {vr(buf+4*f+2*half,2)}, v{addr} offset:{off}"); lq.append(("a", u, f))
            return go
        def mkb(dst, addr, off, tag):
            def go():
                A(f"ds_read_b128 {vr(dst,4)}, v{addr} offset:{off}"); lq.append(tag)
            return go
        if t == "F1" and a == 0:
            for nt in range(2): ops.append(mkb(H2 + 8 * b + 4 * nt, aH2 if b % NH < 8 else aH2h, (b % NH % 8) * 8192 + nt * 4096, ("b", u)))
        if t == "F2" and a == 0:
            for nt in range(2):
                if b < 8: ops.append(mkb(HHR + 8 * b + 4 * nt, aHR, b * 8192 + nt * 1024, ("b", u)))
                else: ops.append(mkb(HHR + 8 * b + 4 * nt, tmp, nt * 1024, ("b", u)))
        for f in frags(u):
            for half in range(2): ops.append(mk(f, half))
        return ops
    def mfma(u, f, nt):
        t, a, b = units[u]
        buf = AB + 16 * (u % 2) + 4 * f
        if t == "F1": acc, B, first = ACC + (f * 2 + nt) * 4, H2 + 8 * b + 4 * nt, b == 0
        elif t == "H1": acc, B, first = ACC + ((f & 1) * 4 + nt) * 4, H2 + 8 * (2 * a + (f >> 1)) + 4 * nt, (a == 0 and f < 2)
        elif t == "F2": acc, B, first = (ACC if a % 2 else ACC2) + (f * 2 + nt) * 4, HHR + 8 * b + 4 * nt, b == 0
        else: acc, B, first = ACC2 + ((f & 1) * 2 + nt) * 4, HHR + 8 * (2 * a + (f >> 1)) + 4 * nt, (a == 0 and f < 2)
        A(f"v_mfma_f32_16x16x32_bf16 {vr(acc,4)}, {vr(buf,4)}, {vr(B,4)}, {'0' if first else vr(acc,4)}")
    def epi1(u):
        t, a, b = units[u]
        T = AB + 16 * (u % 2)
        es = (0, 1) if t == "F1" else (0,)
        for nt in range(2):
            for e in es:
                g = ACC + (e * 2 + nt) * 4; uu = ACC + ((2 + e) * 2 + nt) * 4
                for r in range(4): A(f"v_mul_f32 v{g+r}, v{g+r}, v{uu+r}")
                for q in range(2): A(f"v_cvt_pk_bf16_f32 v{T+4*nt+2*e+q}, v{g+2*q}, v{g+2*q+1}")
            if t == "F1": A(f"ds_write_b128 v{aHW}, {vr(T+4*nt,4)} offset:{a*16384+nt*1024}")
            else: A(f"ds_write_b64 v{aHW2}, {vr(T+4*nt,2)} offset:{nt*1024}")
            lq.append(("hw",))
    def epi2_ops(u):
        t, a, b = units[u]
        ops = []
        acc = (ACC if a % 2 else ACC2) if t == "F2" else ACC2
        for bb in ((0, 1) if t == "F2" else (0,)):
            for nt in range(2):
                jj = (4 * a + 2 * bb) if t == "F2" else 16
                T = STB + (bb * 2 + nt) * 4
                def go(bb=bb, nt=nt, jj=jj, T=T):
                    for e in range(2):
                        s = acc + ((bb * 2 + e) * 2 + nt) * 4
                        for q in range(2): A(f"v_cvt_pk_bf16_f32 v{T+2*e+q}, v{s+2*q}, v{s+2*q+1}")
                    A(f"s_add_u32 s49, s47, {(nt*18+jj)*1024}")
                    A(f"buffer_store_dwordx4 {vr(T,4)}, v{vl16}, s[32:35], s49 offen")
                    vq.append(("st",))
                ops.append(go)
        return ops
    nw = 0; nh = 0
    for j in range(RING):
        if j < NH: dma_h2(j); nh += 1
        dma(j); nw += 1
    A(f"v_add_u32 v{tmp}, 65536, v{aHR}")
    if prio:
        A("s_cmp_eq_u32 s17, 0\ns_cbranch_scc1 K4_noprio\ns_setprio 1\nK4_noprio:")
    A.stamp(1)
    wlim = RING - 1; hlim = NH - 1
    pend = []
    def barrier_before(u1):
        nonlocal wlim, hlim
        tags = [("w", x) for x in range(u1, u1 + SL)] + [("h", x) for x in range(u1, u1 + SL)]
        wait(vq, tags, "vmcnt", 63)
        wait(lq, [("hw",)], "lgkmcnt", 15)
        A("s_barrier")
        wlim = max(wlim, u1 - 2 + RING); hlim = max(hlim, u1 - 2 + NH)
    barrier_before(0)
    A.stamp(2)
    if A.STAMP: A("s_waitcnt lgkmcnt(0)")
    for op in read_ops(0): op()
    for u in range(NU):
        nxt = []
        if u + 1 < NU:
            if (u + 1) % SL == 0: barrier_before(u + 1)
            nxt = read_ops(u + 1)
        extra = []
        if nh < 18 and nh <= hlim:
            k = 1
            for _ in range(k):
                extra.append(lambda j=nh: dma_h2(j)); nh += 1
        if nw < NU and nw <= wlim:
            extra.append(lambda x=nw: dma(x)); nw += 1
        extra += pend[:2]; pend = pend[2:]
        fl = frags(u); slots = 2 * len(fl)
        k = 0
        for f in fl:
            wait(lq, [("a", u, f), ("b", u)], "lgkmcnt", 15)
            for nt in range(2):
                mfma(u, f, nt)
                left = slots - k
                n = -(-len(nxt) // left)
                for op in nxt[:n]: op()
                nxt = nxt[n:]
                if k % 2 == 1 and extra: extra.pop(0)()
                k += 1
        for op in extra: op()
        t, a, b = units[u]
        if (t == "F1" and b == 17) or (t == "H1" and a == 8): epi1(u)
        if t == "F2" and b == 8: pend += epi2_ops(u)
        if u == U_F2 - 1 or u == 17:
            A.stamp(3 if u == 17 else 4)
            if A.STAMP: A("s_waitcnt lgkmcnt(0)"); lq.clear()
    assert not pend
    A.stamp(5)
    for op in epi2_ops(NU - 1): op()
    if A.STAMP: A("s_waitcnt vmcnt(0)")
    A.stamp_flush(4, 6)
    A("K4_end:\ns_endpgm")
    A.end(name, R.hi, 64)

def k5(A):
    name = "k5_kernel"
    A.launch.append((name, 256, 576, 0))
    A.begin(name)
    R = RA(1)
    vl16, m, g, vo, tmp, vg = [R() for _ in range(6)]
    P = R(64, 4); X = R(4, 4); G = R(8, 4); S = R(8, 4)
    A(f"""
    s_cmp_ge_u32 s2, 256
    s_cbranch_scc1 K5_end
    """)
    A.stamp(0)
    A(f"""
    s_load_dwordx2 s[4:5], s[0:1], 72
    s_load_dwordx2 s[8:9], s[0:1], 88
    v_lshrrev_b32 v{tmp}, 6, v0
    v_and_b32 v{vl16}, 63, v0
    v_and_b32 v{m}, 15, v0
    v_readfirstlane_b32 s15, v{tmp}      ; w
    v_lshrrev_b32 v{g}, 4, v{vl16}
    v_lshlrev_b32 v{vl16}, 4, v{vl16}
    s_lshr_b32 s12, s2, 1                ; rt
    s_and_b32 s13, s2, 1                 ; half
    s_mul_i32 s14, s13, 9
    s_add_u32 s14, s14, s15              ; jj
    s_mul_i32 s16, s12, 18
    s_add_u32 s17, s16, s14
    s_lshl_b32 s17, s17, 10
    s_lshl_b32 s18, s15, 1
    s_add_u32 s18, s18, s16
    s_lshl_b32 s18, s18, 10
    s_lshl_b32 s19, s13, 3
    s_add_u32 s18, s18, s19              ; x1 offset
    s_lshl_b32 s19, s14, 7
    v_lshlrev_b32 v{vg}, 4, v{g}
    s_lshr_b32 s36, s12, 1               ; s2
    s_and_b32 s37, s12, 1                ; nt
    s_lshl_b32 s37, s37, 10
    s_add_u32 s36, s36, s37
    s_mul_i32 s36, s36, 1152
    s_lshl_b32 s37, s14, 6
    s_add_u32 s36, s36, s37
    v_mul_u32_u24 v{vo}, {64*1152}, v{m}
    v_lshl_add_u32 v{vo}, v{g}, 3, v{vo}
    s_waitcnt lgkmcnt(0)
    """)
    A.srd(20, 8, 16 * X1_BYTES, WS_P); A.srd(24, 8, X1_BYTES, WS_X1); A.srd(28, 8, 2304, WS_MOD + 4608); A.srd(32, 4, XB)
    for f in range(16):
        A(f"buffer_load_dwordx4 {vr(P+4*f,4)}, v{vl16}, s[20:23], s17 offen")
        if f < 15: A(f"s_add_u32 s17, s17, {X1_BYTES}")
    for e in range(2): A(f"buffer_load_dwordx2 {vr(X+2*e,2)}, v{vl16}, s[24:27], s18 offen offset:{1024*e}")
    for e in range(2): A(f"buffer_load_dwordx4 {vr(G+4*e,4)}, v{vg}, s[28:31], s19 offen offset:{64*e}")
    A.stamp(1)
    for f in range(16):
        A(f"s_waitcnt vmcnt({19-f})")
        for q in range(4):
            if f == 0:
                A(f"v_lshlrev_b32 v{S+2*q}, 16, v{P+q}\nv_and_b32 v{S+2*q+1}, 0xffff0000, v{P+q}")
            else:
                A(f"v_lshlrev_b32 v{tmp}, 16, v{P+4*f+q}\nv_and_b32 v{P+4*f+q}, 0xffff0000, v{P+4*f+q}")
                A(f"v_add_f32 v{S+2*q}, v{S+2*q}, v{tmp}\nv_add_f32 v{S+2*q+1}, v{S+2*q+1}, v{P+4*f+q}")
    A("s_waitcnt vmcnt(0)")
    A.stamp(2)
    for i in range(8):
        A(f"v_and_b32 v{G+i}, 0xffff0000, v{G+i}")
        A(f"v_lshlrev_b32 v{tmp}, 16, v{X+i//2}" if i % 2 == 0 else f"v_and_b32 v{tmp}, 0xffff0000, v{X+i//2}")
        A(f"v_fma_f32 v{S+i}, v{S+i}, v{G+i}, v{tmp}")
    for q in range(4): A(f"v_cvt_pk_bf16_f32 v{P+q}, v{S+2*q}, v{S+2*q+1}")
    for e in range(2): A(f"buffer_store_dwordx2 {vr(P+2*e,2)}, v{vo}, s[32:35], s36 offen offset:{32*e}")
    if A.STAMP: A("s_waitcnt vmcnt(0)")
    A.stamp_flush(5, 3)
    A("K5_end:\ns_endpgm")
    A.end(name, R.hi, 48)
```

```python
import sys
from asmlib import *
import gen_front as GF
HDR = "".join(l for l in open("adaLN_cond__spectral_gfnet__glu_gated_bilinear__prompt.s.ref") if l.startswith(";") and "@launch" not in l and "Override" not in l and "grid=ceil" not in l)
def build(path, stages="012345", **kw):
    A = Asm()
    A.STAMP = "s" in stages
    if "0" in stages: GF.k0(A)
    if "1" in stages: GF.k1(A)
    if "2" in stages: GF.k2(A)
    if "3" in stages: GF.k3(A)
    if "4" in stages or "5" in stages:
        import gen_mlp as GM
        if "4" in stages: GM.k4(A, **kw)
        if "5" in stages: GM.k5(A)
    open(path, "w").write(A.text(HDR))
    return A
if __name__ == "__main__":
    A = build(sys.argv[1], sys.argv[2] if len(sys.argv) > 2 else "012345")
    print("kernels", A.kernels, "pads", A.npad, "lines", len(A.lines))
```
